```python
import torch

def _softmax(x, axis=-1):
    return torch.softmax(x, dim=axis)
def _gelu(x):
    return torch.nn.functional.gelu(x, approximate="tanh")
def _silu(x):
    return torch.nn.functional.silu(x)
def _sigmoid(x):
    return torch.sigmoid(x)
def _layernorm(x, axis=-1, eps=1e-5):
    m = x.mean(dim=axis, keepdim=True)
    v = x.var(dim=axis, keepdim=True, unbiased=False)
    return (x - m) / torch.sqrt(v + eps)
def _scatter_add(tgt, idx, src, axis=0):
    return tgt.clone().index_add_(axis, idx, src)
def _segment_sum(src, seg, n):
    out = torch.zeros((n,) + src.shape[1:], dtype=src.dtype)
    return out.index_add_(0, seg, src)
def _pad(x, pw):
    flat = tuple(v for pair in reversed(pw) for v in pair)
    return torch.nn.functional.pad(x, flat)

kernel_name = 'concat_heads__mha_block_cached__gqa_block_cached__near_ridge'

def setup_inputs():

    _w = (lambda a: (lambda t: t.to(torch.bfloat16) if t.is_floating_point() else t)(torch.as_tensor(a)))
    def _A_setup():
        B, Sq, D = 8, 224, 448
        H, Sk, Dh = 16, 512, 256
        return {
            "x": _w((lambda *s: torch.randn(*s, dtype=torch.bfloat16) * 0.8)(B, Sq, D)),
            "k_cache": _w((lambda *s: torch.randn(*s, dtype=torch.bfloat16) * 0.8)(B, H, Sk, Dh)),
            "v_cache": _w((lambda *s: torch.randn(*s, dtype=torch.bfloat16) * 0.05)(B, H, Sk, Dh)),
            "wq": _w((lambda *s: torch.randn(*s, dtype=torch.bfloat16) * 0.8)(D, H * Dh) * (D ** -0.5)),
            "wo": _w((lambda *s: torch.randn(*s, dtype=torch.bfloat16) * 0.05)(H * Dh, D) * ((H * Dh) ** -0.5)),
        }
    _A_in = _A_setup()

    def _B_setup():
        B, Sq, D = 8, 224, 448
        Hq, Hkv, Sk, Dh = 16, 16, 512, 256
        assert Hq % Hkv == 0, (Hq, Hkv)
        return {
            "x": _w((lambda *s: torch.randn(*s, dtype=torch.bfloat16) * 0.8)(B, Sq, D)),
            "k_cache": _w((lambda *s: torch.randn(*s, dtype=torch.bfloat16) * 0.8)(B, Hkv, Sk, Dh)),
            "v_cache": _w((lambda *s: torch.randn(*s, dtype=torch.bfloat16) * 0.05)(B, Hkv, Sk, Dh)),
            "wq": _w((lambda *s: torch.randn(*s, dtype=torch.bfloat16) * 0.8)(D, Hq * Dh) * (D ** -0.5)),
            "wo": _w((lambda *s: torch.randn(*s, dtype=torch.bfloat16) * 0.05)(Hq * Dh, D) * ((Hq * Dh) ** -0.5)),
        }
    _B_in = _B_setup()

    return {
        "A_x": _A_in["x"],
        "A_k_cache": _A_in["k_cache"],
        "A_v_cache": _A_in["v_cache"],
        "A_wq": _A_in["wq"],
        "A_wo": _A_in["wo"],
        "B_x": _B_in["x"],
        "B_k_cache": _B_in["k_cache"],
        "B_v_cache": _B_in["v_cache"],
        "B_wq": _B_in["wq"],
        "B_wo": _B_in["wo"],
    }

def reference(A_x, A_k_cache, A_v_cache, A_wq, A_wo, B_x, B_k_cache, B_v_cache, B_wq, B_wo):
    def _A_ref(x, k_cache, v_cache, wq, wo):
        B, Sq, D = x.shape
        H, Dh = 16, 256
        q = (lambda x, *d: x.permute(*d))((x @ wq).reshape(B, Sq, H, Dh), 0, 2, 1, 3)
        scores = torch.einsum("bhqd,bhkd->bhqk", q, k_cache) * (Dh ** -0.5)
        p = _softmax(scores, axis=-1)
        o = torch.einsum("bhqk,bhkd->bhqd", p, v_cache)
        return (lambda x, *d: x.permute(*d))(o, 0, 2, 1, 3).reshape(B, Sq, H * Dh) @ wo

    def _B_ref(x, k_cache, v_cache, wq, wo):
        B, Sq, D = x.shape
        Hq, Dh = 16, 256
        Hkv = k_cache.shape[1]
        rep = Hq // Hkv
        q = (lambda x, *d: x.permute(*d))((x @ wq).reshape(B, Sq, Hq, Dh), 0, 2, 1, 3)
        k = (lambda x, n, axis: torch.repeat_interleave(x, n, dim=axis))(k_cache, rep, axis=1)
        v = (lambda x, n, axis: torch.repeat_interleave(x, n, dim=axis))(v_cache, rep, axis=1)
        scores = torch.einsum("bhqd,bhkd->bhqk", q, k) * (Dh ** -0.5)
        p = _softmax(scores, axis=-1)
        o = torch.einsum("bhqk,bhkd->bhqd", p, v)
        return (lambda x, *d: x.permute(*d))(o, 0, 2, 1, 3).reshape(B, Sq, Hq * Dh) @ wo

    a = _A_ref(A_x, A_k_cache, A_v_cache, A_wq, A_wo)
    b = _B_ref(B_x, B_k_cache, B_v_cache, B_wq, B_wo)
    return torch.concatenate([a, b], axis=-1)
```

```python
NAME = "concat_heads__mha_block_cached__gqa_block_cached__near_ridge"
class Asm:
    def __init__(self):
        self.lines = []
        self.lab = 0
    def __call__(self, s):
        for l in s.strip("\n").split("\n"):
            self.lines.append("    " + l.strip())
    def label(self, n):
        self.lines.append(n + ":")
    def newlabel(self, p="L"):
        self.lab += 1
        return "%s_%d" % (p, self.lab)
    def raw(self, s):
        self.lines.append(s)
    def text(self):
        return "\n".join(self.lines) + "\n"

def kernel_header(name):
    return f""".globl {name}
.p2align 8
.type {name},@function
{name}:
"""
def kernel_desc(name, vgpr, accum, sgpr=102):
    return f""".p2align 6
.amdhsa_kernel {name}
  .amdhsa_next_free_vgpr {vgpr}
  .amdhsa_next_free_sgpr {sgpr}
  .amdhsa_accum_offset {accum}
  .amdhsa_group_segment_fixed_size 0
  .amdhsa_kernarg_size 104
  .amdhsa_user_sgpr_count 2
  .amdhsa_user_sgpr_kernarg_segment_ptr 1
  .amdhsa_system_sgpr_workgroup_id_x 1
.end_amdhsa_kernel
"""
def build_file(launches, kernels):
    out = []
    if len(launches) == 1 and launches[0][0] == NAME + "_kernel":
        k, g, b, l = launches[0]
        out.append(f"; @launch grid=({g},1,1) block=({b},1,1) lds={l}")
    else:
        for k, g, b, l in launches:
            out.append(f"; @launch kernel={k} grid=({g},1,1) block=({b},1,1) lds={l}")
    out.append('.amdgcn_target "amdgcn-amd-amdhsa--gfx950"')
    out.append(".text")
    for name, body, vgpr, accum in kernels:
        out.append(kernel_header(name).rstrip("\n"))
        out.append(body.rstrip("\n"))
    out.append('.section .rodata,"a"')
    for name, body, vgpr, accum in kernels:
        out.append(kernel_desc(name, vgpr, accum).rstrip("\n"))
    return "\n".join(out) + "\n"
```

```python
import re, sys

def R(kind, lo, n=1):
    return [(kind, lo + i) for i in range(n)]
def rs(kind, lo, n=1):
    return f"{kind}{lo}" if n == 1 else f"{kind}[{lo}:{lo+n-1}]"

class Reg:
    def __init__(self, kind, lo, n=1):
        self.kind, self.lo, self.n = kind, lo, n
    def __str__(self): return rs(self.kind, self.lo, self.n)
    def regs(self): return R(self.kind, self.lo, self.n)
    def __getitem__(self, i):
        if isinstance(i, slice):
            return Reg(self.kind, self.lo + i.start, i.stop - i.start)
        assert 0 <= i < self.n
        return Reg(self.kind, self.lo + i, 1)
def V(lo, n=1): return Reg('v', lo, n)
def A(lo, n=1): return Reg('a', lo, n)
def S(lo, n=1): return Reg('s', lo, n)

def _regs(x):
    out = []
    for r in x:
        if isinstance(r, Reg): out += r.regs()
        elif isinstance(r, tuple): out.append(r)
        elif r is None: pass
        else: raise ValueError(r)
    return out

class Ins:
    def __init__(self, text, kind, rd=(), wr=(), tag=None, cregs=(), need=None, lgkm0=False, vm0=False, note=""):
        self.text, self.kind = text, kind
        self.rd, self.wr = _regs(rd), _regs(wr)
        self.cregs = _regs(cregs)
        self.tag = tag
        self.need = need
        self.lgkm0, self.vm0 = lgkm0, vm0
        self.vmN, self.lgN = None, None
        self.note = note
        self.req = []
        self.after = []
        self.deadline = 1 << 30
        self.earliest = 0
        self.emitted = False
        self.pos = None
        self.mpos = None
    def render(self):
        if self.kind == 'wait':
            parts = []
            vm = 0 if self.vm0 else self.vmN
            lg = 0 if self.lgkm0 else self.lgN
            if vm is not None and vm < 63: parts.append(f"vmcnt({vm})")
            if lg is not None and lg < 15: parts.append(f"lgkmcnt({lg})")
            if not parts: return None
            return "s_waitcnt " + " ".join(parts)
        return self.text

def mfma(d, a, b, c=None):
    ctext = "0" if c is None else str(c)
    return Ins(f"v_mfma_f32_16x16x32_bf16 {d}, {a}, {b}, {ctext}", 'mfma', rd=[a, b, c], wr=[d], cregs=[c])
def valu(text, wr, rd): return Ins(text, 'valu', rd=rd, wr=wr)
def trans(text, wr, rd): return Ins(text, 'trans', rd=rd, wr=wr)
def salu(text, wr=(), rd=()): return Ins(text, 'salu', rd=rd, wr=wr)
def wait(need=None, lgkm0=False, vm0=False): return Ins("", 'wait', need=need, lgkm0=lgkm0, vm0=vm0)
def barrier(): return Ins("s_barrier", 'barrier')
def dsr(op, d, addr, off): return Ins(f"{op} {d}, {addr} offset:{off}", 'dsr', rd=[addr], wr=[d])
def dsw(op, addr, s, off): return Ins(f"{op} {addr}, {s} offset:{off}", 'dsw', rd=[addr, s])
M0 = ('s', 'm0')
def dma(voff, srd, soff, off, tag, flags=""):
    o = f" offset:{off}" if off else ""
    return Ins(f"buffer_load_dwordx4 {voff}, {srd}, {soff} offen{o}{flags} lds", 'dma', rd=[voff, M0], tag=tag)
def vld(op, d, voff, srd, soff, off, tag=None, flags=""):
    o = f" offset:{off}" if off else ""
    return Ins(f"{op} {d}, {voff}, {srd}, {soff} offen{o}{flags}", 'vld', rd=[voff], wr=[d], tag=tag)
def vst(op, s, voff, srd, soff, off, tag=None, flags=""):
    o = f" offset:{off}" if off else ""
    return Ins(f"{op} {s}, {voff}, {srd}, {soff} offen{o}{flags}", 'vst', rd=[voff, s], tag=tag)
def perm(op, a, b): return Ins(f"{op} {a}, {b}", 'perm', rd=[a, b], wr=[a, b])
def nop(n): return Ins(f"s_nop {n}", 'nop', note=str(n))
def label(n): return Ins(n + ":", 'label')
def branch(text): return Ins(text, 'branch')

VALUK = ('valu', 'trans', 'perm')
def states(i):
    if i.kind == 'label': return 0
    if i.kind == 'nop': return int(i.note) + 1
    if i.kind == 'wait' and i.render() is None: return 0
    return 1

def required_gap(p, c):
    n = 0
    pw, pr = set(p.wr), set(p.rd)
    cr, cw = set(c.rd), set(c.wr)
    if p.kind in VALUK:
        if c.kind == 'mfma' and pw & cr: n = max(n, 2)
        if c.kind == 'perm' and pw & cr: n = max(n, 2)
        if p.kind == 'trans' and c.kind in ('valu', 'perm') and pw & cr: n = max(n, 1)
        sw = {r for r in pw if r[0] == 's'}
        if sw & cr:
            if c.kind in ('dma', 'vld', 'vst'): n = max(n, 5)
            elif c.kind in VALUK: n = max(n, 2)
            else: n = max(n, 1)
        if 'readfirstlane' in c.text and pw & cr: n = max(n, 1)
    if p.kind == 'mfma':
        if c.kind == 'mfma':
            ab = cr - set(c.cregs)
            if pw & ab: n = max(n, 8)
            if pw & set(c.cregs) and set(c.cregs) != pw: n = max(n, 6)
            if pw & cw and not (pw & set(c.cregs)): n = max(n, 6)
        else:
            if pw & (cr | cw): n = max(n, 8)
            if c.kind in VALUK and set(p.cregs) & cw: n = max(n, 3)
    if p.kind == 'salu' and M0 in pw and c.kind == 'dma': n = max(n, 1)
    if p.kind in ('vst',) and ('x4' in p.text or 'x3' in p.text) and (pr & cw): n = max(n, 2)
    if p.kind == 'dsw' and (pr & cw) and c.kind in VALUK: n = max(n, 1)
    return n

class Sched:
    def __init__(self, name, hist=None):
        self.name = name
        self.out = []
        self.hist = list(hist or [])
        self.streams = []
        self.overflow = 0
        self.nm = 0
    def stream(self, items):
        self.streams.append(list(items))
    def _hz_ok(self, it, extra=()):
        seq = self.hist[-12:] + self.out[-12:] + list(extra)
        d = 0
        for p in reversed(seq):
            if required_gap(p, it) > d: return False
            d += 1 if p.kind != 'wait' else 0
            if d >= 9: break
        return True
    def _ready(self, it):
        if self.nm < it.earliest: return False
        for r in it.req:
            if not r.emitted: return False
        for (p, g) in it.after:
            if not p.emitted or self.nm - p.mpos < g: return False
        return True
    def _emit(self, it):
        it.emitted = True; it.pos = len(self.out); it.mpos = self.nm
        self.out.append(it)
    def _force(self, it):
        if it.emitted: return
        for s in self.streams:
            if it in s:
                while True:
                    h = s.pop(0)
                    for r in h.req: self._force(r)
                    for (p, g) in h.after:
                        if not p.emitted: self._force(p)
                    self._pad(h); self._emit(h); self.overflow += 2 if h.kind == 'trans' else 1
                    if h is it: break
                return
        raise RuntimeError(f"{self.name}: required item not in any stream: {it.text}")
    def _pad(self, it):
        need = 0
        seq = self.hist[-12:] + self.out[-12:]
        d = 0
        for p in reversed(seq):
            need = max(need, required_gap(p, it) - d)
            d += states(p) if p.kind != 'wait' else 0
            if d >= 9: break
        if need > 0:
            self._emit(nop(need - 1)); self.overflow += need
    def fill_gap(self, reserve_wait=None):
        slot1 = reserve_wait
        ds = None; rest = []; used = 0; full = False
        while not full and used < 2:
            cands = []
            for s in self.streams:
                if not s: continue
                it = s[0]
                if not self._ready(it): continue
                k = it.kind
                if k in ('salu', 'wait', 'barrier', 'branch'):
                    if slot1 is None and ds is None and not rest: ok = True
                    else: ok = used < 2
                elif k == 'dsr': ok = ds is None and not rest and used < 2
                elif k in ('valu', 'perm'): ok = used < 2
                elif k == 'trans': ok = used == 0
                elif k in ('dma', 'vld', 'vst', 'dsw'): ok = slot1 is None and used == 0
                else: raise ValueError(k)
                if not ok: continue
                cur = ([slot1] if slot1 else []) + ([ds] if ds else []) + rest
                if not self._hz_ok(it, cur): continue
                cands.append((it.deadline, s))
            if not cands: break
            cands.sort(key=lambda x: x[0])
            pick = None
            if slot1 is None and ds is None and not rest:
                best = cands[0][1][0]
                if best.kind not in ('dma', 'vld', 'vst', 'dsw'):
                    for d, s in cands:
                        if s[0].kind in ('salu', 'wait', 'barrier', 'branch'): pick = s; break
            if pick is None:
                pick = cands[0][1]
                if pick[0].kind in ('valu', 'perm') and ds is None and not rest:
                    for d, s in cands:
                        if s[0].kind == 'dsr': pick = s; break
            it = pick.pop(0)
            it.emitted = True; it.mpos = self.nm
            k = it.kind
            if k in ('salu', 'wait', 'barrier', 'branch'):
                if slot1 is None and ds is None and not rest: slot1 = it
                else: rest.append(it); used += 1
                if k == 'barrier': full = True
            elif k == 'dsr': ds = it; used += 1
            elif k in ('valu', 'perm'): rest.append(it); used += 1
            elif k == 'trans': rest.append(it); used = 2
            else: rest.append(it); full = True
        for it in ([slot1] if slot1 else []) + ([ds] if ds else []) + rest:
            self._emit(it)
    def run(self, mfmas, waits_before=(), flush=True):
        for i, m in enumerate(mfmas):
            forced = False
            for r in m.req:
                if not r.emitted:
                    self._force(r); forced = True
            if forced or (i == 0 and i in waits_before):
                self._emit(wait())
            self._pad(m)
            self._emit(m); self.nm += 1
            self.fill_gap(wait() if (i + 1) in waits_before else None)
        if flush: self.flush()
        return self.out
    def flush(self):
        while any(self.streams):
            s = min((s for s in self.streams if s), key=lambda s: s[0].deadline)
            self._force(s[0])

class Prog:
    def __init__(self): self.segs = []
    def straight(self, l): self.segs.append(('s', 1, list(l)))
    def loop(self, n, l): self.segs.append(('l', n, list(l)))
    def trace(self):
        for k, n, l in self.segs:
            for it in range(n):
                for i in l: yield i, it
    def resolve(self):
        tr = list(self.trace())
        for i, _ in tr:
            if i.kind == 'wait': i.vmN = None; i.lgN = None
        lds_n = 0; vm_n = 0
        pend = {}
        tagpos = {}
        waits = []
        for pos, (i, it) in enumerate(tr):
            if i.kind == 'wait':
                waits.append((pos, i, lds_n, vm_n))
                if i.need is not None:
                    for t in i.need(it):
                        if t not in tagpos: raise RuntimeError(f"wait needs unknown tag {t}")
                        n = vm_n - tagpos[t] - 1
                        i.vmN = n if i.vmN is None else min(i.vmN, n)
                continue
            for r in set(i.rd) | set(i.wr):
                if r in pend:
                    c, opi, opos = pend.pop(r)
                    if i.kind in ('dsr', 'vld') and r in i.wr and r not in i.rd and c == ('l' if i.kind == 'dsr' else 'v'):
                        continue
                    if not waits or waits[-1][0] < opos:
                        raise RuntimeError(f"no wait between load and consumer: {i.text} reg {r}")
                    cov = False
                    for wp, w, wl, wv in reversed(waits):
                        if wp < opos: break
                        if c == 'l' and (w.lgkm0 or (w.lgN is not None and w.lgN <= wl - opi - 1)): cov = True; break
                        if c == 'v' and (w.vm0 or (w.vmN is not None and w.vmN <= wv - opi - 1)): cov = True; break
                    if not cov:
                        wp, w, wl, wv = waits[-1]
                        if c == 'l':
                            n = wl - opi - 1; w.lgN = n if w.lgN is None else min(w.lgN, n)
                        else:
                            n = wv - opi - 1; w.vmN = n if w.vmN is None else min(w.vmN, n)
            if i.kind in ('dsr', 'dsw'):
                if i.kind == 'dsr':
                    for r in i.wr: pend[r] = ('l', lds_n, pos)
                lds_n += 1
            if i.kind in ('dma', 'vld', 'vst'):
                if i.kind == 'vld' and i.note != 'touch':
                    for r in i.wr: pend[r] = ('v', vm_n, pos)
                if i.tag is not None:
                    t = i.tag(it) if callable(i.tag) else i.tag
                    tagpos[t] = vm_n
                vm_n += 1
        for i, _ in tr:
            if i.kind == 'wait':
                if i.lgN is not None and i.lgN > 14: i.lgN = 14
                if i.vmN is not None and i.vmN > 62: i.vmN = 62
    def uninit(self, pre):
        w = {('v', 0)}
        for i in pre: w |= set(i.wr)
        for i, _ in self.trace():
            for r in i.rd:
                if r[0] in 'va' and r not in w: print(f"UNINIT read {r} by [{i.text}]", file=sys.stderr)
            w |= set(i.wr)
    def check(self):
        tr = [i for i, _ in self.trace()]
        bad = 0
        for k, c in enumerate(tr):
            if c.kind in ('label', 'wait', 'nop'): continue
            d = 0
            for p in reversed(tr[max(0, k - 24):k]):
                if required_gap(p, c) > d:
                    print(f"HAZARD: [{p.text}] -> [{c.text}] need {required_gap(p, c)} have {d}", file=sys.stderr); bad += 1
                d += states(p)
                if d >= 9: break
        return bad
    def text(self):
        out = []
        for k, n, l in self.segs:
            for i in l:
                t = i.render()
                if t is None: continue
                out.append(t if i.kind == 'label' else "    " + t)
        return "\n".join(out) + "\n"
    def cycles(self):
        tot = 0; res = []
        for k, n, l in self.segs:
            c = 0; gap = None
            def close(gap):
                if gap is None: return 0
                t = 4; first = True; sawv = False
                for j in gap:
                    kk = j.kind
                    if kk in ('salu', 'wait', 'barrier', 'branch', 'nop'):
                        t += 4 * states(j)
                    else:
                        t = max(t, 8) if kk not in ('dma', 'vld', 'vst', 'dsw') else t
                        if kk == 'dsr': t += 4 + (8 if sawv else 0)
                        elif kk == 'trans': t += 8; sawv = True
                        elif kk in ('dma', 'vld'): t += 12
                        elif kk in ('vst', 'dsw'): t += 24
                        else: t += 4; sawv = True
                return max(16, t)
            pre = 0
            for i in l:
                if i.kind == 'label' or i.render() is None: continue
                if i.kind == 'mfma':
                    c += close(gap); gap = []
                elif gap is None: pre += 4 * states(i) + (4 if i.kind == 'trans' else 0)
                else: gap.append(i)
            c += close(gap) + pre
            res.append((k, n, c)); tot += c * n
        return tot, res
```

```python
import sys, math, struct
from sched import *
from asmlib import build_file, NAME

class Cfg:
    nt_kv = " nt"
    nt_w = ""
    nt_x = ""
    st = " sc1"
    touch = True
    stamps = False
    U = 8
    L = 4
cfg = Cfg()

SLOT = 33024
SL = [0, SLOT, 2 * SLOT, 3 * SLOT]
XB = 4 * SLOT
LDS_BYTES = 163840
GRP = 4128
CHUNK_STRIDE = 262144
GRP_STRIDE = 15 * CHUNK_STRIDE
SCALE = math.log2(math.e) / 16.0
def f2u(x): return struct.unpack("<I", struct.pack("<f", x))[0]

vT0, vKrd, vVrd, vDMA, vWq, vTK, vTD, vXo, vXp, vRdA, vRdB, vTV = [V(i) for i in range(12)]
vL = V(12, 4)
vC = [V(16 + 4 * t, 4) for t in range(4)]
RING = 8
vF = [V(32 + 4 * i, 4) for i in range(RING)]
def ACC(slot, t):
    if slot < 2: return V(64 + slot * 16 + t * 4, 4)
    assert t < 3
    return V(64 + 32 + (slot - 2) * 12 + t * 4, 4)
def vQ(t, u): return V(120 + (t * 8 + u) * 4, 4)
def vQs(i): return V(216 + i * 4, 4)
vWo, vX, vL16, vL8 = V(232), V(233), V(234), V(235)
vRinv = V(236, 4)
vTmp = V(240, 16)
def aX(t, ks): return A((t * 14 + ks) * 4, 4)
def aO(t, d): return A(t * 64 + d * 4, 4)
def aR(i): return A(224 + 4 * i, 4)
aP = A(240, 4)

sW, sPar = S(3), S(36)
srdX, srdK, srdV, srdWQ, srdWO, srdWS = S(8, 4), S(12, 4), S(16, 4), S(20, 4), S(24, 4), S(28, 4)
sH, sB, sBlk = S(37), S(38), S(39)
sXo = [S(56 + t) for t in range(4)]
sWqBase, sWqOff, sWqM0 = S(60), S(61), S(62)
sOffK, sOffV, sStA, sStB, sStC = S(63), S(64), S(65), S(66), S(67)
sM0K, sM0V, sTog, sJ = S(68), S(69), S(70), S(71)
sM0w = S(72)
sSig, sSig3, sSt1, sSt2, sSt2p, sStBase, sDel, sM0o, sOffO = [S(73 + i) for i in range(9)]
sScale, sT0, sT1, sT2 = S(82), S(83), S(84), S(85)
sP1, sP2 = S(86), S(87)
sStamp = S(88, 2)
sStampOff = S(90)
sSlot = S(91)

def stamp(idx):
    if not cfg.stamps: return []
    return [salu(f"s_memrealtime {sStamp}"), salu("s_waitcnt lgkmcnt(0)"),
            valu(f"v_mov_b32 {vTmp[15]}, {sStamp[0]}", [vTmp[15]], []), valu(f"v_mov_b32 {vTmp[14]}, 0", [vTmp[14]], []),
            vst("buffer_store_dword", vTmp[15], vTmp[14], S(32, 4), sStampOff, idx * 4)]

def prologue():
    o = []
    a = lambda t, wr=(), rd=(): o.append(salu(t, wr, rd))
    v = lambda t, wr=(), rd=(): o.append(valu(t, wr, rd))
    a("s_cmp_ge_u32 s2, 256"); o.append(branch("s_cbranch_scc1 L_end"))
    a("s_and_b32 s4, s2, 7")
    a(f"s_lshr_b32 {sBlk}, s4, 2")
    a(f"s_mul_i32 s5, {sBlk}, 40")
    a("s_add_u32 s6, s0, s5"); a("s_addc_u32 s7, s1, 0")
    a("s_load_dwordx8 s[40:47], s[6:7], 0")
    a("s_load_dwordx2 s[48:49], s[6:7], 32")
    a("s_load_dwordx2 s[50:51], s[0:1], 96")
    a("s_and_b32 s4, s4, 3"); a("s_lshl_b32 s4, s4, 2")
    a("s_lshr_b32 s5, s2, 3"); a("s_and_b32 s5, s5, 3")
    a(f"s_or_b32 {sH}, s4, s5")
    a(f"s_lshr_b32 {sB}, s2, 5")
    v(f"v_lshrrev_b32 {vTD}, 6, v0", [vTD], [vT0])
    v(f"v_and_b32 v0, 63, v0", [vT0], [vT0])
    v(f"v_readfirstlane_b32 {sW}, {vTD}", [sW], [vTD])
    T = [vTmp[i] for i in range(8)]
    v(f"v_and_b32 {T[0]}, 15, v0", [T[0]], [vT0])
    v(f"v_lshrrev_b32 {T[1]}, 4, v0", [T[1]], [vT0])
    v(f"v_bfe_u32 {T[2]}, v0, 2, 2", [T[2]], [vT0])
    v(f"v_and_b32 {T[3]}, 3, v0", [T[3]], [vT0])
    v(f"v_lshlrev_b32 {vL16}, 4, v0", [vL16], [vT0])
    v(f"v_lshlrev_b32 {vL8}, 3, v0", [vL8], [vT0])
    v(f"v_mov_b32 {vDMA}, {vL16}", [vDMA], [vL16])
    v(f"v_mul_u32_u24 {vX}, 896, {T[0]}", [vX], [T[0]])
    v(f"v_lshl_add_u32 {vX}, {T[1]}, 4, {vX}", [vX], [vX, T[1]])
    v(f"v_bfe_u32 {T[4]}, v0, 3, 2", [T[4]], [vT0])
    v(f"v_lshlrev_b32 {vWq}, 16, {T[4]}", [vWq], [T[4]])
    v(f"v_lshrrev_b32 {T[4]}, 5, v0", [T[4]], [vT0])
    v(f"v_lshl_add_u32 {vWq}, {T[4]}, 15, {vWq}", [vWq], [vWq, T[4]])
    v(f"v_and_b32 {T[5]}, 7, v0", [T[5]], [vT0])
    v(f"v_lshl_add_u32 {vWq}, {T[5]}, 4, {vWq}", [vWq], [vWq, T[5]])
    a(f"s_and_b32 {sPar}, {sW}, 1", [sPar], [sW])
    a(f"s_lshl_b32 {sWqBase}, {sW}, 13")
    a(f"s_mul_i32 {sWqM0}, {sW}, 7168")
    a(f"s_lshl_b32 s4, {sPar}, 3"); a(f"s_add_u32 {sWqM0}, {sWqM0}, s4")
    a(f"s_lshr_b32 s4, {sW}, 1"); a("s_lshl_b32 s5, s4, 6"); a(f"s_add_u32 {sWqM0}, {sWqM0}, s5")
    a(f"s_mul_i32 {sXo[0]}, {sW}, {3*14336}")
    a(f"s_add_u32 {sXo[1]}, {sXo[0]}, 14336"); a(f"s_add_u32 {sXo[2]}, {sXo[0]}, {2*14336}")
    a(f"s_mul_i32 {sXo[3]}, s4, 14336"); a(f"s_add_u32 {sXo[3]}, {sXo[3]}, {12*14336}")
    a("s_waitcnt lgkmcnt(0)")
    def srd(r, lo, hi, offs, size):
        a(f"s_add_u32 {r[0]}, s{lo}, {offs}"); a(f"s_addc_u32 {r[1]}, s{hi}, 0")
        a(f"s_and_b32 {r[1]}, {r[1]}, 0xffff")
        a(f"s_mov_b32 {r[2]}, {size}"); a(f"s_mov_b32 {r[3]}, 0x20000")
    a(f"s_lshl_b32 s4, {sH}, 9")
    a(f"s_sub_u32 s5, {448*8192}, s4")
    srd(srdWQ, 46, 47, "s4", "s5")
    a(f"s_mul_i32 s4, {sB}, 200704")
    srd(srdX, 40, 41, "s4", 200704)
    return o

def prologue2():
    o = []
    a = lambda t, wr=(), rd=(): o.append(salu(t, wr, rd))
    v = lambda t, wr=(), rd=(): o.append(valu(t, wr, rd))
    T = [vTmp[i] for i in range(8)]
    def srd(r, lo, hi, offs, size):
        a(f"s_add_u32 {r[0]}, s{lo}, {offs}"); a(f"s_addc_u32 {r[1]}, s{hi}, 0")
        a(f"s_and_b32 {r[1]}, {r[1]}, 0xffff")
        a(f"s_mov_b32 {r[2]}, {size}"); a(f"s_mov_b32 {r[3]}, 0x20000")
    a(f"s_lshl_b32 s4, {sB}, 4"); a(f"s_add_u32 s4, s4, {sH}"); a("s_lshl_b32 s4, s4, 18")
    srd(srdK, 42, 43, "s4", 262144)
    srd(srdV, 44, 45, "s4", 262144)
    a(f"s_mul_i32 s4, {sH}, 229376")
    srd(srdWO, 48, 49, "s4", 229376)
    a(f"s_lshl_b32 s4, {sBlk}, 3"); a(f"s_add_u32 s4, s4, {sB}"); a(f"s_mul_i32 s4, s4, {GRP_STRIDE}")
    srd(srdWS, 50, 51, "s4", GRP_STRIDE)
    if cfg.stamps:
        srd(S(32, 4), 50, 51, str(128 << 20), 1 << 20)
        a(f"s_lshl_b32 {sStampOff}, s2, 2"); a(f"s_add_u32 {sStampOff}, {sStampOff}, {sW}"); a(f"s_lshl_b32 {sStampOff}, {sStampOff}, 7")
    a(f"s_mul_i32 {sM0w}, {sW}, {GRP}")
    a(f"s_lshl_b32 {sOffK}, {sW}, 12"); a(f"s_mov_b32 {sOffV}, {sOffK}")
    a(f"s_mov_b32 {sStA}, 0"); a(f"s_mov_b32 {sStB}, 16384"); a(f"s_mov_b32 {sStC}, 16384")
    a(f"s_mov_b32 {sScale}, 0x{f2u(SCALE):08x}")
    v(f"v_mul_u32_u24 {vRdA}, 7168, {T[2]}", [vRdA], [T[2]])
    v(f"v_and_b32 {T[4]}, 1, {T[2]}", [T[4]], [T[2]])
    v(f"v_lshl_add_u32 {vRdA}, {T[4]}, 3, {vRdA}", [vRdA], [vRdA, T[4]])
    v(f"v_lshrrev_b32 {T[4]}, 1, {T[2]}", [T[4]], [T[2]])
    v(f"v_lshl_add_u32 {vRdA}, {T[4]}, 6, {vRdA}", [vRdA], [vRdA, T[4]])
    v(f"v_lshl_add_u32 {vRdA}, {T[1]}, 7, {vRdA}", [vRdA], [vRdA, T[1]])
    v(f"v_lshl_add_u32 {vRdA}, {T[3]}, 4, {vRdA}", [vRdA], [vRdA, T[3]])
    v(f"v_add_u32 {vRdB}, {SL[3]}, {vRdA}", [vRdB], [vRdA])
    v(f"v_add_u32 {vRdA}, {SL[2]}, {vRdA}", [vRdA], [vRdA])
    v(f"v_mul_u32_u24 {vKrd}, {GRP}, {T[5]}", [vKrd], [T[5]])
    v(f"v_bfe_u32 {T[4]}, v0, 3, 1", [T[4]], [vT0])
    v(f"v_lshl_add_u32 {vKrd}, {T[4]}, 9, {vKrd}", [vKrd], [vKrd, T[4]])
    v(f"v_lshl_add_u32 {vKrd}, {T[1]}, 4, {vKrd}", [vKrd], [vKrd, T[1]])
    v(f"v_bfe_u32 {T[4]}, v0, 2, 3", [T[4]], [vT0])
    v(f"v_mul_u32_u24 {vVrd}, {GRP}, {T[4]}", [vVrd], [T[4]])
    v(f"v_lshrrev_b32 {T[4]}, 5, v0", [T[4]], [vT0])
    v(f"v_lshl_add_u32 {vVrd}, {T[4]}, 9, {vVrd}", [vVrd], [vVrd, T[4]])
    v(f"v_lshl_add_u32 {vVrd}, {T[3]}, 3, {vVrd}", [vVrd], [vVrd, T[3]])
    v(f"v_add_u32 {vVrd}, {SL[1]}, {vVrd}", [vVrd], [vVrd])
    v(f"v_lshrrev_b32 {T[4]}, 3, v0", [T[4]], [vT0])
    v(f"v_mul_u32_u24 {vWo}, 3584, {T[4]}", [vWo], [T[4]])
    v(f"v_lshl_add_u32 {vWo}, {T[5]}, 4, {vWo}", [vWo], [vWo, T[5]])
    a(f"s_lshl_b32 s4, {sW}, 12"); a(f"s_add_u32 s4, s4, {XB}")
    v(f"v_add_u32 {vXo}, s4, {vL16}", [vXo], [vL16])
    a(f"s_xor_b32 s5, {sW}, 1"); a("s_lshl_b32 s5, s5, 12"); a(f"s_add_u32 s5, s5, {XB}")
    v(f"v_add_u32 {vXp}, s5, {vL16}", [vXp], [vL16])
    a(f"s_lshl_b32 s4, {sW}, 13"); a("s_add_u32 s4, s4, 32768")
    v(f"v_lshlrev_b32 {vTK}, 7, v0", [vTK], [vT0])
    v(f"v_add_u32 {vTK}, s4, {vTK}", [vTK], [vTK])
    v(f"v_mov_b32 {vTV}, {vTK}", [vTV], [vTK])
    v(f"v_mul_u32_u24 v0, {GRP}, {T[2]}", [vT0], [T[2]])
    v(f"v_lshl_add_u32 v0, {T[1]}, 7, v0", [vT0], [vT0, T[1]])
    v(f"v_lshl_add_u32 v0, {T[3]}, 3, v0", [vT0], [vT0, T[3]])
    for t in range(4): v(f"v_mov_b32 {vL[t]}, 0", [vL[t]], [])
    a(f"s_lshr_b32 {sSig}, {sH}, 1"); a(f"s_add_u32 {sSig}, {sSig}, 1")
    a(f"s_cmp_ge_u32 {sSig}, 7"); a(f"s_cselect_b32 s4, 7, 0"); a(f"s_sub_u32 {sSig}, {sSig}, s4")
    a(f"s_and_b32 {sP2}, {sH}, 1"); a(f"s_xor_b32 {sP1}, {sP2}, 1")
    a(f"s_lshl_b32 {sStBase}, {sW}, 16"); a(f"s_lshl_b32 s4, {sH}, 12"); a(f"s_add_u32 {sStBase}, {sStBase}, s4")
    a(f"s_mov_b32 {sTog}, {2*SLOT}")
    a(f"s_mov_b32 {sJ}, 0")
    a(f"s_mov_b32 {sSlot}, {SLOT}")
    a(f"s_add_u32 {sM0K}, {sM0w}, {SL[0]}")
    a(f"s_add_u32 {sM0V}, {sM0w}, {SL[3]}")
    return o

WQBUF = [SL[2], SL[3], XB]
def wq_dma(hs):
    s, hh = hs >> 1, hs & 1
    o = []
    for i in range(7):
        ks = 7 * hh + i
        imm = (i & 3) * 1024
        if (i & 3) == 0:
            o.append(salu(f"s_add_u32 m0, {sWqM0}, {WQBUF[hs % 3] + i * 1024}", [M0]))
        o.append(salu(f"s_add_u32 {sWqOff}, {sWqBase}, {ks * 262144 + s * 128 - imm}"))
        o.append(dma(vWq, srdWQ, sWqOff, imm, ('wq', hs), cfg.nt_w))
    return o

def kv_dma(srd, soff, m0expr, tag, generic):
    o = []
    for i in range(8):
        if (i & 3) == 0: o.append(salu(m0expr(i >> 2), [M0]))
        o.append(dma(vDMA, srd, soff, (i & 3) * 1024, tag, cfg.nt_kv))
        if i == 3: o.append(salu(f"s_add_u32 {soff}, {soff}, {sStB}"))
        elif i == 7: o.append(salu(f"s_add_u32 {soff}, {soff}, {sStC}"))
        elif generic: o.append(salu(f"s_add_u32 {soff}, {soff}, {sStA}"))
    return o

def touch(srd, voff):
    if not cfg.touch: return []
    t = vld("buffer_load_dword", vTD, voff, srd, "0", 0, flags=cfg.nt_kv); t.note = 'touch'
    return [t, valu(f"v_add_u32 {voff}, 0x8000, {voff}", [voff], [voff])]

class Frags:
    def __init__(self): self.f = []
    def add(self, reads, uses): self.f.append((reads, uses))
    def build(self, start=0, extra=()):
        mf = []; wb = set(); last = []; first = []; per = []
        n = len(self.f)
        for i in range(0, n, 2):
            wb.add(len(mf))
            pair = [self.f[i], self.f[i + 1]]
            ms = [[u(vF[(i + k) % RING]) for u in pair[k][1]] for k in range(2)]
            first += [len(mf), len(mf)]
            for t in range(max(len(ms[0]), len(ms[1]))):
                for k in range(2):
                    if t < len(ms[k]): mf.append(ms[k][t])
            last += [ms[0][-1], ms[1][-1]]
            per += ms
        reads = []
        allf = [f[0] for f in self.f] + list(extra)
        for i, rf in enumerate(allf):
            items = rf(vF[i % RING])
            dl = (first[i] if i < n else len(mf) + (i - n) // 2 * 8) - 16
            for it in items:
                it.deadline = dl
                if i >= RING: it.req.append(last[i - RING])
            reads.append(items)
            if start <= i < n:
                for m in per[i]: m.req += items
        return mf, wb, reads, last, first, per

def tr2(addr, o0, o1):
    return lambda r: [dsr("ds_read_b64_tr_b16", r[0:2], addr, o0), dsr("ds_read_b64_tr_b16", r[2:4], addr, o1)]
def b128(addr, o): return lambda r: [dsr("ds_read_b128", r, addr, o)]

def Qb(p, t, u):
    if t < 3: return vQ(t, u)
    return vQs(u >> 1) if (u & 1) == p else aR(u >> 1)

def k_order(p): return [0, 1, 2, 3] if p == 0 else [2, 3, 0, 1]
def s_first_reads(p): return [b128(vKrd, k_order(p)[0] * 1024 + u * 64) for u in range(cfg.L)]

def insert_barrier(reads, idx, need, pre=(), lag=5):
    w = wait(need=need, lgkm0=True); b = barrier()
    lastrd = reads[idx - 1][-1]
    w.after.append((lastrd, lag)); w.req += list(pre)
    for x in pre: w.after.append((x, lag))
    w.deadline = b.deadline = reads[idx][0].deadline - 2
    for k in range(1, 5):
        for it in reads[idx - k]: it.deadline = min(it.deadline, w.deadline - lag - 2 * k)
    reads[idx] = [w, b] + reads[idx]
    return b

def qproj(p):
    F = Frags()
    fin = {}
    for hs in range(8):
        s, hh = hs >> 1, hs & 1
        buf = hs % 3
        addr, boff = (vRdA, 0) if buf == 0 else (vRdB, 0 if buf == 1 else SLOT)
        for pi_i, pi in enumerate((p, 1 - p)):
            for tau in range(2):
                slot = pi_i * 2 + tau
                tiles = [3, 0, 1, 2] if pi_i == 0 else [0, 1, 2]
                for i in range(7):
                    ks = 7 * hh + i
                    o = boff + i * 1024 + 64 * pi + 8 * tau
                    F.add(tr2(addr, o, o + 512),
                          [(lambda r, t=t, ks=ks, slot=slot: mfma(ACC(slot, t), r, aX(t, ks), None if ks == 0 else ACC(slot, t))) for t in tiles])
                    fin[(s, hh, slot, i)] = len(F.f) - 1
    nq = len(F.f)
    for u in range(8):
        F.add(b128(vKrd, u * 64), [(lambda r, t=t, u=u: mfma(ACC(0, t), r, Qb(p, t, u), None if u == 0 else ACC(0, t))) for t in [0, 1, 2, 3]])
    mf, wb, reads, last, first, per = F.build(extra=s_first_reads(p))
    sc = Sched(f"qproj{p}")
    conv = []; qdone = {}; xw = []
    for s in range(4):
        for pi_i, pi in enumerate((p, 1 - p)):
            u = 2 * s + pi
            tiles = [3, 0, 1, 2] if pi_i == 0 else [0, 1, 2]
            for tau in range(2):
                slot = pi_i * 2 + tau
                fi = fin[(s, 1, slot, 6)]
                for ti, t in enumerate(tiles):
                    acc = ACC(slot, t); dst = vQ(t, u) if t < 3 else vQs(s)
                    its = [valu(f"v_mul_f32 {acc[r]}, {sScale}, {acc[r]}", [acc[r]], [acc[r]]) for r in range(4)]
                    its += [valu(f"v_cvt_pk_bf16_f32 {dst[2*tau+k]}, {acc[2*k]}, {acc[2*k+1]}", [dst[2*tau+k]], [acc[2*k], acc[2*k+1]]) for k in range(2)]
                    for it in its:
                        it.req.append(per[fi][ti]); it.deadline = first[fi] + 30
                    conv += its
                    qdone[(t, u, tau)] = its[-1]
                    if s < 3: nxt = per[fin[(s + 1, 0, slot, 0)]][ti]
                    else: nxt = per[nq][t] if slot == 0 else None
                    if nxt is not None: nxt.req.append(its[-1])
    for u in range(8):
        for t in range(4):
            if t < 3 or (u & 1) == p:
                per[nq + u][t].req += [qdone[(t, u, 0)], qdone[(t, u, 1)]]
    bars = {}
    for hs in range(1, 8):
        bars[hs] = insert_barrier(reads, hs * 28, (lambda it, hs=hs: [('wq', hs)]))
    for s in range(4):
        w = dsw("ds_write_b128", vXo, vQs(s), s * 1024)
        w.req += [qdone[(3, 2 * s + p, 1)], bars[6]]; w.deadline = first[nq] - 40
        xw.append(w)
    bk = insert_barrier(reads, nq, lambda it: [('K', 0)], pre=xw)
    rq = [dsr("ds_read_b128", aR(s), vXp, s * 1024) for s in range(4)]
    for r in rq: r.deadline = bk.deadline
    reads[nq] = reads[nq][:2] + rq[:1] + reads[nq][2:]
    reads[nq + 1] = reads[nq + 1] + rq[1:]
    for u in range(8):
        if (u & 1) != p: per[nq + u][3].req.append(rq[u >> 1])
    dm = []
    def addd(items, req=None, dl=0, earliest=0):
        for it in items:
            if req is not None: it.req.append(req)
            it.deadline = dl; it.earliest = earliest
        dm.extend(items)
    xl = lambda ks: [vld("buffer_load_dwordx4", aX(t, ks), vX, srdX, sXo[t], ks * 64, flags=cfg.nt_x) for t in [3, 0, 1, 2]]
    pre = wq_dma(0)
    for ks in range(7): pre += xl(ks)
    pre += wq_dma(1)
    pre += prologue2()
    for ks in range(7, 12): pre += xl(ks)
    for ks in range(12, 14): addd(xl(ks), dl=20)
    addd(wq_dma(2), dl=30)
    addd(kv_dma(srdK, sOffK, lambda k: f"s_add_u32 m0, {sM0w}, {SL[0] + k * 4 * GRP}", ('K', 0), False), dl=60)
    addd(wq_dma(3), bars[1], dl=first[28] + 20)
    addd(kv_dma(srdV, sOffV, lambda k: f"s_add_u32 m0, {sM0w}, {SL[1] + k * 4 * GRP}", ('V', 0), False), dl=first[28] + 60)
    addd(wq_dma(4), bars[2], dl=first[56] + 20)
    addd(touch(srdK, vTK), dl=first[56] + 60)
    addd(wq_dma(5), bars[3], dl=first[84] + 20)
    addd(wq_dma(6), bars[4], dl=first[112] + 20)
    addd(touch(srdV, vTV), dl=first[112] + 60)
    addd(wq_dma(7), bars[5], dl=first[140] + 20)
    addd(touch(srdK, vTK), bars[6], dl=first[168] + 20)
    addd(kv_dma(srdK, sOffK, lambda k: f"s_add_u32 m0, {sM0w}, {SL[2] + k * 4 * GRP}", ('K', 1), False), bars[7], dl=first[196] + 20)
    zero = []
    for hh in range(2):
        for t, slot, ti in [(3, 1, 0)]:
            for i in range(7):
                for r in range(4):
                    z = valu(f"v_accvgpr_write_b32 {aX(3, 7*hh+i)[r]}, 0", [aX(3, 7*hh+i)[r]], []); z.req.append(per[fin[(3, hh, 1, i)]][0]); zero.append(z)
        for i in range(7):
            for t in range(3):
                for r in range(4):
                    z = valu(f"v_accvgpr_write_b32 {aX(t, 7*hh+i)[r]}, 0", [aX(t, 7*hh+i)[r]], []); z.req.append(per[fin[(3, hh, 3, i)]][t]); zero.append(z)
    for z in zero: z.deadline = len(mf) + 50
    head = pre + [wait(need=lambda it: [('wq', 0)]), barrier()] + stamp(1)
    sc.hist = head
    sc.stream([x for r in reads for x in r]); sc.stream(conv); sc.stream(dm); sc.stream(xw); sc.stream(zero)
    for k in range(4):
        for it in reads[k]: sc._force(it)
    sc.overflow = 0
    sc.run(mf, wb, flush=False)
    tail = []
    for t in range(4):
        acc = ACC(0, t); m = vC[t][0]; tmp = vC[t][1]
        tail.append([valu(f"v_max3_f32 {m}, {acc[0]}, {acc[1]}, {acc[2]}", [m], [acc[0], acc[1], acc[2]]),
                     valu(f"v_max_f32 {m}, {m}, {acc[3]}", [m], [m, acc[3]]),
                     valu(f"v_mov_b32 {tmp}, {m}", [tmp], [m]),
                     perm("v_permlane16_swap_b32", m, tmp),
                     valu(f"v_max_f32 {m}, {m}, {tmp}", [m], [m, tmp]),
                     valu(f"v_mov_b32 {tmp}, {m}", [tmp], [m]),
                     perm("v_permlane32_swap_b32", m, tmp),
                     valu(f"v_max_f32 {m}, {m}, {tmp}", [m], [m, tmp]),
                     valu(f"v_sub_f32 {m}, 0, {m}", [m], [m])] +
                    [valu(f"v_mov_b32 {vC[t][r]}, {m}", [vC[t][r]], [m]) for r in range(1, 4)])
    sc.flush()
    for k in range(12):
        for t in range(4):
            sc._pad(tail[t][k]); sc._emit(tail[t][k])
    print(f"qproj{p}: mfma {len(mf)} overflow {sc.overflow}", file=sys.stderr)
    return head + sc.out + stamp(2)

def attn_body(p, hist):
    F = Frags()
    ko = k_order(p)
    for slot, kt in enumerate(ko):
        tiles = [3, 0, 1, 2] if slot < 2 else [0, 1, 2]
        for u in range(8):
            F.add(b128(vKrd, kt * 1024 + u * 64),
                  [(lambda r, t=t, u=u, slot=slot: mfma(ACC(slot, t), r, Qb(p, t, u), vC[t] if u == 0 else ACC(slot, t))) for t in tiles])
    def pvfrag(dd, second):
        d = dd ^ (8 * p); ks = p ^ second
        tiles = [0, 1, 2, 3] if dd < 8 else [0, 1, 2]
        def Pb(t):
            if t < 3: return ACC(2 * second, t)
            return aP if second else ACC(0, 3)
        F.add(tr2(vVrd, 2 * ks * 1024 + d * 32, (2 * ks + 1) * 1024 + d * 32),
              [(lambda r, t=t: mfma(aO(t, d if t < 3 else dd), r, Pb(t), aO(t, d if t < 3 else dd))) for t in tiles])
        pvinfo.append((second, tiles))
    pvinfo = []
    U = cfg.U
    for dd in range(U): pvfrag(dd, 0)
    for dd in range(U, 16): pvfrag(dd, 0); pvfrag(dd, 1)
    for dd in range(U): pvfrag(dd, 1)
    mf, wb, reads, last, first, per = F.build(start=cfg.L, extra=s_first_reads(p))
    sc = Sched(f"attn{p}", hist)
    ex = []; va = []; pdone = {}
    for slot in range(4):
        tiles = [3, 0, 1, 2] if slot < 2 else [0, 1, 2]
        fi = slot * 8 + 7
        for ti, t in enumerate(tiles):
            acc = ACC(slot, t); dst = ACC(slot & 2, t); o = 2 * (slot & 1)
            es = [trans(f"v_exp_f32 {acc[r]}, {acc[r]}", [acc[r]], [acc[r]]) for r in range(4)]
            for e in es:
                e.req.append(per[fi][ti]); e.deadline = first[fi] + 8
            ex += es
            for k in range(2):
                its = [valu(f"v_add_f32 {vL[t]}, {vL[t]}, {acc[2*k+r]}", [vL[t]], [vL[t], acc[2*k+r]]) for r in range(2)]
                its[0].req.append(es[2*k]); its[1].req.append(es[2*k+1])
                its.append(valu(f"v_cvt_pk_bf16_f32 {dst[o+k]}, {acc[2*k]}, {acc[2*k+1]}", [dst[o+k]], [acc[2*k], acc[2*k+1]]))
                for it in its: it.deadline = first[fi] + 12
                va += its
            pdone[(slot, t)] = va[-1]
    pw = dsw("ds_write_b128", vXo, ACC(0, 3), 16384); pw.req.append(pdone[(1, 3)]); pw.deadline = 0
    bv = insert_barrier(reads, 32, lambda j: [('V', j)], pre=[pw])
    pr = dsr("ds_read_b128", aP, vXp, 16384); pr.deadline = reads[34][0].deadline
    reads[34] = reads[34] + [pr]
    for k, (second, tiles) in enumerate(pvinfo):
        for ti, t in enumerate(tiles):
            m = per[32 + k][ti]
            if t == 3 and second: m.req.append(pr)
            else: m.req.append(pdone[(2 * second + 1, t)])
    bk = insert_barrier(reads, 64, lambda j: [('K', j + 1)])
    tk = valu(f"v_add_u32 {vKrd}, {sTog}, {vKrd}", [vKrd], [vKrd]); tk.req.append(reads[31][-1]); tk.deadline = first[40]
    tv = valu(f"v_add_u32 {vVrd}, {sTog}, {vVrd}", [vVrd], [vVrd]); tv.req.append(reads[63][-1]); tv.deadline = len(mf) - 6
    for it in reads[64][2:]: it.req.append(tk)
    dm = []
    gB = kv_dma(srdV, sOffV, lambda k: f"s_mov_b32 m0, {sM0V}" if k == 0 else f"s_add_u32 m0, {sM0V}, {4*GRP}", lambda j: ('V', j + 1), True) + touch(srdV, vTV)
    for it in gB: it.deadline = 20
    sw = Ins(f"s_cmp_eq_u32 {sJ}, 6\n    s_cbranch_scc1 L_switch{p}\nL_switched{p}:", 'salu', wr=[vDMA]); sw.deadline = 40
    gA = kv_dma(srdK, sOffK, lambda k: f"s_mov_b32 m0, {sM0K}" if k == 0 else f"s_add_u32 m0, {sM0K}, {4*GRP}", lambda j: ('K', j + 2), True) + touch(srdK, vTK)
    for it in gA: it.req.append(bv); it.deadline = first[32] + 50; it.earliest = first[32] + 30
    upd = [salu(f"s_sub_u32 {sM0V}, {sM0V}, {sTog}"), salu(f"s_add_u32 {sM0K}, {sM0K}, {sTog}"), salu(f"s_add_u32 {sJ}, {sJ}, 1")]
    for it in upd: it.deadline = len(mf) - 10
    neg = salu(f"s_sub_u32 {sTog}, 0, {sTog}"); neg.req += [tk, tv]; neg.deadline = len(mf) - 4
    dm = gB + [sw] + gA + upd + [neg]
    sc.stream([x for r in reads[cfg.L:] for x in r]); sc.stream(ex); sc.stream(va); sc.stream([pw]); sc.stream(dm); sc.stream([tk, tv])
    sc.run(mf, wb)
    print(f"attn{p}: mfma {len(mf)} overflow {sc.overflow}", file=sys.stderr)
    body = [label(f"L_attn{p}")] + sc.out + [salu(f"s_cmp_lt_u32 {sJ}, 8"), branch(f"s_cbranch_scc1 L_attn{p}")]
    return body

def switch_stub(p):
    t = [f"L_switch{p}:"]
    for k in range(4):
        t.append(f"    s_mov_b32 {srdK[k]}, {srdWO[k]}"); t.append(f"    s_mov_b32 {srdV[k]}, {srdWO[k]}")
    t += [f"    v_mov_b32 {vDMA}, {vWo}",
          f"    s_mov_b32 {sStA}, 27648", f"    s_mov_b32 {sStB}, 31744",
          f"    s_mul_i32 {sT0}, {sW}, 896",
          f"    s_lshl_b32 {sT1}, {sSig}, 7", f"    s_add_u32 {sOffK}, {sT0}, {sT1}",
          f"    s_add_u32 {sSig3}, {sSig}, 1", f"    s_cmp_ge_u32 {sSig3}, 7", f"    s_cselect_b32 {sSig3}, 0, {sSig3}",
          f"    s_lshl_b32 {sT2}, {sSig3}, 7", f"    s_add_u32 {sOffV}, {sT0}, {sT2}",
          f"    s_add_u32 {sSig3}, {sSig3}, 1", f"    s_cmp_ge_u32 {sSig3}, 7", f"    s_cselect_b32 {sSig3}, 0, {sSig3}",
          f"    s_lshl_b32 {sT2}, {sSig3}, 7", f"    s_sub_u32 {sStC}, {sT2}, {sT1}",
          f"    s_sub_u32 {sStC}, {sStC}, {6*27648 + 31744}",
          f"    s_add_u32 {sSig3}, {sSig3}, 1", f"    s_cmp_ge_u32 {sSig3}, 7", f"    s_cselect_b32 {sSig3}, 0, {sSig3}",
          f"    s_branch L_switched{p}"]
    return "\n".join(t) + "\n"

def Ob(p, t, ks):
    if t < 3: return vQ(t, ks)
    return vQs(ks & 3) if (ks >> 2) == p else aR(ks & 3)
def op_off(ks, jj, tau): return (ks >> 2) * 4 * GRP + (ks & 3) * 1024 + jj * 512 + 32 * tau
def op_first_reads(p): return [tr2(vRdA, op_off(ks, 0, p), op_off(ks, 1, p)) for ks in range(cfg.L)]

def mid(p, hist):
    sc = Sched(f"mid{p}", hist)
    def e(i): sc._pad(i); sc._emit(i)
    for i in stamp(3): e(i)
    T = vTmp
    for t in (3, 0, 1, 2): e(valu(f"v_mov_b32 {T[t]}, {vL[t]}", [T[t]], [vL[t]]))
    for t in (3, 0, 1, 2): e(perm("v_permlane16_swap_b32", vL[t], T[t]))
    for t in (3, 0, 1, 2): e(valu(f"v_add_f32 {vL[t]}, {vL[t]}, {T[t]}", [vL[t]], [vL[t], T[t]]))
    for t in (3, 0, 1, 2): e(valu(f"v_mov_b32 {T[t]}, {vL[t]}", [T[t]], [vL[t]]))
    for t in (3, 0, 1, 2): e(perm("v_permlane32_swap_b32", vL[t], T[t]))
    for t in (3, 0, 1, 2): e(valu(f"v_add_f32 {vL[t]}, {vL[t]}, {T[t]}", [vL[t]], [vL[t], T[t]]))
    e(dsw("ds_write_b32", vXo, vL[3], 16384 + 1024))
    def conv(dst, t, d0):
        for k in range(8): e(valu(f"v_accvgpr_read_b32 {T[8+k]}, {aO(t, d0 + (k >> 2))[k & 3]}", [T[8+k]], [aO(t, d0 + (k >> 2))[k & 3]]))
        for k in range(4): e(valu(f"v_cvt_pk_bf16_f32 {dst[k]}, {T[8+2*k]}, {T[9+2*k]}", [dst[k]], [T[8+2*k], T[9+2*k]]))
    for i in range(4):
        conv(vQs(i), 3, 2 * i); e(dsw("ds_write_b128", vXo, vQs(i), i * 1024))
    e(salu(f"s_lshl_b32 {sT0}, {sP1}, 6")); e(salu(f"s_lshl_b32 {sT1}, {sP2}, 6"))
    e(valu(f"v_add_u32 {vRdA}, {sT0}, v0", [vRdA], [vT0])); e(valu(f"v_add_u32 {vRdB}, {sT1}, v0", [vRdB], [vT0]))
    e(salu(f"s_mov_b32 {sJ}, 0"))
    e(salu(f"s_add_u32 {sM0o}, {sM0w}, {SL[3]}"))
    e(salu(f"s_add_u32 {sSt2}, {sStBase}, {14*CHUNK_STRIDE}"))
    e(salu(f"s_lshl_b32 {sP1}, {sP1}, 18")); e(salu(f"s_lshl_b32 {sP2}, {sP2}, 18"))
    e(salu(f"s_add_u32 {sP1}, {sP1}, {sStBase}")); e(salu(f"s_add_u32 {sP2}, {sP2}, {sStBase}"))
    for ks in range(4):
        for t in range(3): conv(vQ(t, ks), t, 2 * ks)
    e(wait(lgkm0=True)); e(barrier())
    e(dsr("ds_read_b32", T[0], vXp, 16384 + 1024))
    for i in range(4): e(dsr("ds_read_b128", aR(i), vXp, i * 1024))
    for i, rf in enumerate(op_first_reads(p)):
        for it in rf(vF[i]): e(it)
    for ks in range(4, 8):
        for t in range(3): conv(vQ(t, ks), t, 2 * ks)
    e(wait())
    e(valu(f"v_add_f32 {vL[3]}, {vL[3]}, {T[0]}", [vL[3]], [vL[3], T[0]]))
    for t in range(4): e(trans(f"v_rcp_f32 {vRinv[t]}, {vL[t]}", [vRinv[t]], [vL[t]]))
    for i in stamp(4): e(i)
    return sc.out

def op_conv(p, pi_i, soff):
    res = []
    for k, slot in enumerate((pi_i, 2 + pi_i)):
        tiles = [3, 0, 1, 2] if k == 0 else [0, 1, 2]
        for ti, t in enumerate(tiles):
            acc = ACC(slot, t); dst = ACC(pi_i, t)
            its = [valu(f"v_mul_f32 {acc[r]}, {vRinv[t]}, {acc[r]}", [acc[r]], [acc[r], vRinv[t]]) for r in range(4)]
            its += [valu(f"v_cvt_pk_bf16_f32 {dst[2*k+c]}, {acc[2*c]}, {acc[2*c+1]}", [dst[2*k+c]], [acc[2*c], acc[2*c+1]]) for c in range(2)]
            st = None
            if t == 3: st = vst("buffer_store_dwordx2", dst[0:2], vL8, srdWS, soff, 3072, flags=cfg.st)
            elif k == 1: st = vst("buffer_store_dwordx4", dst, vL16, srdWS, soff, t * 1024, flags=cfg.st)
            res.append((slot, ti, t, its, st))
    return res

def op_body(p, hist):
    F = Frags()
    order = []
    for pi_i in range(2):
        addr = vRdA if pi_i == 0 else vRdB
        for k, tau in enumerate((p, 1 - p)):
            slot = pi_i + 2 * k
            tiles = [3, 0, 1, 2] if k == 0 else [0, 1, 2]
            for ks in range(8):
                F.add(tr2(addr, op_off(ks, 0, tau), op_off(ks, 1, tau)),
                      [(lambda r, t=t, ks=ks, slot=slot: mfma(ACC(slot, t), r, Ob(p, t, ks), None if ks == 0 else ACC(slot, t))) for t in tiles])
            order.append(slot)
    mf, wb, reads, last, first, per = F.build(start=cfg.L, extra=op_first_reads(p))
    sc = Sched(f"op{p}", hist)
    fidx = {slot: order.index(slot) * 8 for slot in order}
    va = []; sts = []
    scal = [salu(f"s_mov_b32 {sSt2p}, {sSt2}"),
            salu(f"s_lshl_b32 {sT0}, {sSig}, 19"), salu(f"s_add_u32 {sSt1}, {sT0}, {sP1}"), salu(f"s_add_u32 {sSt2}, {sT0}, {sP2}"),
            salu(f"s_add_u32 {sSig}, {sSig}, 1"), Ins(f"s_cmp_ge_u32 {sSig}, 7\n    s_cselect_b32 {sSig}, 0, {sSig}", 'salu'),
            Ins(f"s_cmp_eq_u32 {sJ}, 3\n    s_cselect_b32 {sDel}, {(-3*SLOT) & 0xffffffff}, {sSlot}", 'salu')]
    for it in scal: it.deadline = 0
    prev = [x for x in op_conv(p, 1, sSt2p) if x[0] == 3]
    for slot, ti, t, its, st in prev:
        for it in its: it.deadline = 10
        va += its; st.req += [its[-1], scal[0]]; st.deadline = 20; sts.append(st)
        per[fidx[3]][ti].req.append(its[-1])
        per[fidx[1]][ti + 1].req.append(st)
    cur = op_conv(p, 0, sSt1) + [x for x in op_conv(p, 1, sSt2) if x[0] == 1]
    for slot, ti, t, its, st in cur:
        fi = fidx[slot] + 7
        for it in its: it.req.append(per[fi][ti]); it.deadline = first[fi] + 14
        va += its
        if st is not None:
            st.req += [its[-1], scal[3]]; st.deadline = first[fi] + 24; sts.append(st)
    bn = insert_barrier(reads, 32, lambda t: [[('V', 8)], [('K', 9)], [('wo', 3)], [('wo', 4)], [('wo', 5)], [('wo', 6)], []][t])
    ta = valu(f"v_add_u32 {vRdA}, {sDel}, {vRdA}", [vRdA], [vRdA]); ta.req += [reads[15][-1], scal[-1]]; ta.deadline = first[20]
    tb = valu(f"v_add_u32 {vRdB}, {sDel}, {vRdB}", [vRdB], [vRdB]); tb.req.append(reads[31][-1]); tb.deadline = len(mf) - 4
    for it in reads[32][2:]: it.req.append(ta)
    dm = [salu(f"s_mul_i32 {sOffO}, {sW}, 896"), salu(f"s_lshl_b32 {sT1}, {sSig3}, 7"), salu(f"s_add_u32 {sOffO}, {sOffO}, {sT1}"),
          Ins(f"s_cmp_ge_u32 {sJ}, 4\n    s_cselect_b32 {srdK[2]}, 0, {srdK[2]}", 'salu')]
    dm += kv_dma(srdK, sOffO, lambda k: f"s_mov_b32 m0, {sM0o}" if k == 0 else f"s_add_u32 m0, {sM0o}, {4*GRP}", lambda t: ('wo', t + 3), True)
    dm += [salu(f"s_add_u32 {sSig3}, {sSig3}, 1"), Ins(f"s_cmp_ge_u32 {sSig3}, 7\n    s_cselect_b32 {sSig3}, 0, {sSig3}", 'salu'),
           Ins(f"s_cmp_eq_u32 {sJ}, 0\n    s_cselect_b32 {sT1}, {(-3*SLOT) & 0xffffffff}, {sSlot}", 'salu'),
           Ins(f"s_cmp_eq_u32 {sJ}, 4\n    s_cselect_b32 {sT1}, {(-3*SLOT) & 0xffffffff}, {sT1}", 'salu'),
           salu(f"s_add_u32 {sM0o}, {sM0o}, {sT1}"), salu(f"s_add_u32 {sJ}, {sJ}, 1")]
    for it in dm: it.deadline = 60
    dm[-1].req.append(scal[-1])
    sc.stream([x for r in reads[cfg.L:] for x in r]); sc.stream(va); sc.stream(sts); sc.stream(scal); sc.stream(dm); sc.stream([ta, tb])
    sc.run(mf, wb)
    print(f"op{p}: mfma {len(mf)} overflow {sc.overflow}", file=sys.stderr)
    return [label(f"L_op{p}")] + sc.out + [salu(f"s_cmp_lt_u32 {sJ}, 7"), branch(f"s_cbranch_scc1 L_op{p}")]

def op_tail(p, hist):
    sc = Sched(f"tail{p}", hist)
    def e(i): sc._pad(i); sc._emit(i)
    for slot, ti, t, its, st in [x for x in op_conv(p, 1, sSt2) if x[0] == 3]:
        for it in its: e(it)
        e(st)
    for i in stamp(5): e(i)
    e(wait(vm0=True, lgkm0=True))
    for i in stamp(6): e(i)
    e(Ins("s_endpgm", 'branch'))
    return sc.out

def main_kernel():
    pro = prologue()
    txt = ""
    P0 = Prog(); P0.straight(pro)
    txt += P0.text()
    txt += f"    s_cmp_eq_u32 {sPar}, 1\n    s_cbranch_scc1 L_odd\n"
    for p in range(2):
        if p == 1: txt += "L_odd:\n"
        P = Prog()
        q = qproj(p)
        P.straight(q)
        ab = attn_body(p, q[-12:])
        P.loop(8, ab)
        m = mid(p, ab[-14:])
        P.straight(m)
        ob = op_body(p, m[-12:])
        P.loop(7, ob)
        P.straight(op_tail(p, ob[-14:]))
        P.resolve()
        P.uninit(pro)
        bad = P.check()
        tot, res = P.cycles()
        print(f"parity {p}: hazards {bad}; est cycles {tot} {res}", file=sys.stderr)
        assert bad == 0
        txt += P.text() + switch_stub(p)
    txt += "L_end:\n    s_endpgm\n"
    return txt

def reduce_kernel():
    L = []
    a = L.append
    a("s_cmp_ge_u32 s2, 224"); a("s_cbranch_scc1 L_rend")
    a("s_load_dwordx2 s[4:5], s[0:1], 80"); a("s_load_dwordx2 s[6:7], s[0:1], 96")
    a("s_mul_i32 s16, s2, 4682"); a("s_lshr_b32 s16, s16, 16")
    a("s_mul_i32 s17, s16, 14"); a("s_sub_u32 s17, s2, s17")
    a("v_lshrrev_b32 v1, 6, v0"); a("v_and_b32 v0, 63, v0"); a("v_readfirstlane_b32 s3, v1")
    a("v_lshlrev_b32 v2, 4, v0"); a("v_lshlrev_b32 v3, 3, v0")
    a(f"s_mul_i32 s18, s16, {GRP_STRIDE}")
    a("s_waitcnt lgkmcnt(0)")
    a("s_add_u32 s8, s6, s18"); a("s_addc_u32 s9, s7, 0"); a("s_and_b32 s9, s9, 0xffff"); a(f"s_mov_b32 s10, {GRP_STRIDE}"); a("s_mov_b32 s11, 0x20000")
    a("s_mov_b32 s12, s4"); a("s_and_b32 s13, s5, 0xffff"); a(f"s_mov_b32 s14, {8*224*896*2}"); a("s_mov_b32 s15, 0x20000")
    a("s_lshl_b32 s19, s17, 18"); a("s_lshl_b32 s20, s3, 16"); a("s_add_u32 s19, s19, s20")
    for h in range(16):
        b = 32 + h * 14
        for t in range(3): a(f"buffer_load_dwordx4 v[{b+4*t}:{b+4*t+3}], v2, s[8:11], s19 offen offset:{t*1024}")
        a(f"buffer_load_dwordx2 v[{b+12}:{b+13}], v3, s[8:11], s19 offen offset:3072")
        a("s_add_u32 s19, s19, 4096")
    a("s_and_b32 s21, s16, 7"); a("s_lshr_b32 s22, s16, 3")
    a(f"s_mul_i32 s21, s21, {224*1792}"); a("s_mul_i32 s22, s22, 896"); a("s_add_u32 s21, s21, s22")
    a("s_lshl_b32 s22, s17, 6"); a("s_add_u32 s21, s21, s22")
    a("s_and_b32 s23, s3, 1"); a("s_lshl_b32 s24, s23, 5"); a("s_xor_b32 s25, s24, 32")
    a(f"s_mul_i32 s26, s3, {3*16*1792}"); a("s_add_u32 s26, s26, s21")
    a("s_lshr_b32 s27, s3, 1"); a("s_add_u32 s27, s27, 12"); a(f"s_mul_i32 s27, s27, {16*1792}"); a("s_add_u32 s27, s27, s21"); a("s_add_u32 s27, s27, s24")
    a("v_and_b32 v1, 15, v0"); a("v_mul_u32_u24 v1, 1792, v1"); a("v_lshrrev_b32 v2, 4, v0"); a("v_lshl_add_u32 v1, v2, 3, v1")
    for h in range(16):
        b = 32 + h * 14
        a(f"s_waitcnt vmcnt({(15-h)*4})")
        for k in range(14):
            if h == 0:
                a(f"v_lshlrev_b32 v{4+2*k}, 16, v{b+k}"); a(f"v_and_b32 v{5+2*k}, 0xffff0000, v{b+k}")
            else:
                a(f"v_lshlrev_b32 v2, 16, v{b+k}"); a(f"v_and_b32 v3, 0xffff0000, v{b+k}")
                a(f"v_add_f32 v{4+2*k}, v{4+2*k}, v2"); a(f"v_add_f32 v{5+2*k}, v{5+2*k}, v3")
    for k in range(14): a(f"v_cvt_pk_bf16_f32 v{32+k}, v{4+2*k}, v{5+2*k}")
    for t in range(3):
        a(f"s_add_u32 s28, s26, s24"); a(f"s_add_u32 s29, s26, s25")
        a(f"buffer_store_dwordx2 v[{32+4*t}:{33+4*t}], v1, s[12:15], s28 offen")
        a(f"buffer_store_dwordx2 v[{34+4*t}:{35+4*t}], v1, s[12:15], s29 offen")
        a(f"s_add_u32 s26, s26, {16*1792}")
    a("buffer_store_dwordx2 v[44:45], v1, s[12:15], s27 offen")
    return "\n".join("    " + x for x in L) + "\nL_rend:\n    s_endpgm\n"

def build():
    return build_file([("mha_main_kernel", 256, 256, LDS_BYTES), ("mha_reduce_kernel", 224, 256, 0)],
                      [("mha_main_kernel", main_kernel(), 512, 256), ("mha_reduce_kernel", reduce_kernel(), 256, 256)])

if __name__ == "__main__":
    out = sys.argv[1]
    for kv in sys.argv[2:]:
        k, v = kv.split("=", 1)
        cur = getattr(cfg, k)
        if isinstance(cur, bool): v = v in ("1", "True")
        elif isinstance(cur, int): v = int(v)
        else: v = (" " + v.replace("_", " ")) if v else ""
        setattr(cfg, k, v)
    open(out, "w").write(build())
```
